```python
import torch

def _softmax(x, axis=-1):
    return torch.softmax(x, dim=axis)
def _gelu(x):
    return torch.nn.functional.gelu(x, approximate="tanh")
def _silu(x):
    return torch.nn.functional.silu(x)
def _sigmoid(x):
    return torch.sigmoid(x)
def _layernorm(x, axis=-1, eps=1e-5):
    m = x.mean(dim=axis, keepdim=True)
    v = x.var(dim=axis, keepdim=True, unbiased=False)
    return (x - m) / torch.sqrt(v + eps)
def _scatter_add(tgt, idx, src, axis=0):
    return tgt.clone().index_add_(axis, idx, src)
def _segment_sum(src, seg, n):
    out = torch.zeros((n,) + src.shape[1:], dtype=src.dtype)
    return out.index_add_(0, seg, src)
def _pad(x, pw):
    flat = tuple(v for pair in reversed(pw) for v in pair)
    return torch.nn.functional.pad(x, flat)

kernel_name = 'gated_mix__ssm_conv_s5__glu_gated_reglu__prompt'

def setup_inputs():

    _w = (lambda a: (lambda t: t.to(torch.bfloat16) if t.is_floating_point() else t)(torch.as_tensor(a)))
    def _A_setup():
        B, S, D = 1, 2048, 576
        P = D
        Lambda_re = -0.5 * (lambda _x: torch.exp(torch.as_tensor(_x)))((lambda *s: torch.randn(*s, dtype=torch.bfloat16) * 0.2)(P))
        Lambda_im = (lambda *s: torch.randn(*s, dtype=torch.bfloat16) * 0.4)(P) * 1.0
        B_re = (lambda *s: torch.randn(*s, dtype=torch.bfloat16) * 0.2)(P, D) * (D ** -0.5)
        B_im = (lambda *s: torch.randn(*s, dtype=torch.bfloat16) * 0.2)(P, D) * (D ** -0.5)
        C_re = (lambda *s: torch.randn(*s, dtype=torch.bfloat16) * 0.2)(D, P) * (P ** -0.5)
        C_im = (lambda *s: torch.randn(*s, dtype=torch.bfloat16) * 0.2)(D, P) * (P ** -0.5)
        log_dt = (lambda *s: torch.randn(*s, dtype=torch.bfloat16) * 0.2)(P) * 0.3 - 2.0
        Dskip = (lambda *s: torch.randn(*s, dtype=torch.bfloat16) * 0.05)(D)
        return {
            "x": _w((lambda *s: torch.randn(*s, dtype=torch.bfloat16) * 0.05)(B, S, D)),
            "Lambda_re": _w(Lambda_re),
            "Lambda_im": _w(Lambda_im),
            "B_re": _w(B_re),
            "B_im": _w(B_im),
            "C_re": _w(C_re),
            "C_im": _w(C_im),
            "log_dt": _w(log_dt),
            "Dskip": _w(Dskip),
        }
    _A_in = _A_setup()

    def _B_setup():
        B, S, D, F = 1, 2048, 576, 4608
        return {
            "x": _w((lambda *s: torch.randn(*s, dtype=torch.bfloat16) * 0.05)(B, S, D)),
            "W_gate": _w((lambda *s: torch.randn(*s, dtype=torch.bfloat16) * 0.8)(D, F) * (2.0 / D) ** 0.5),
            "W_up": _w((lambda *s: torch.randn(*s, dtype=torch.bfloat16) * 0.8)(D, F) * (2.0 / D) ** 0.5),
            "W_down": _w((lambda *s: torch.randn(*s, dtype=torch.bfloat16) * 0.8)(F, D) * (1.0 / F) ** 0.5),
        }
    _B_in = _B_setup()

    return {
        "A_x": _A_in["x"],
        "A_Lambda_re": _A_in["Lambda_re"],
        "A_Lambda_im": _A_in["Lambda_im"],
        "A_B_re": _A_in["B_re"],
        "A_B_im": _A_in["B_im"],
        "A_C_re": _A_in["C_re"],
        "A_C_im": _A_in["C_im"],
        "A_log_dt": _A_in["log_dt"],
        "A_Dskip": _A_in["Dskip"],
        "B_x": _B_in["x"],
        "B_W_gate": _B_in["W_gate"],
        "B_W_up": _B_in["W_up"],
        "B_W_down": _B_in["W_down"],
        "gate_w": _w((lambda *s: torch.randn(*s, dtype=torch.bfloat16) * 0.05)(576) * 16.0),
    }

def reference(A_x, A_Lambda_re, A_Lambda_im, A_B_re, A_B_im, A_C_re, A_C_im, A_log_dt, A_Dskip, B_x, B_W_gate, B_W_up, B_W_down, gate_w):
    def _A_ref(x, Lambda_re, Lambda_im, B_re, B_im, C_re, C_im, log_dt, Dskip):
        Bsz, L, H = x.shape
        Lam = Lambda_re + 1j * Lambda_im
        Bmat = B_re + 1j * B_im
        Cmat = C_re + 1j * C_im
        dt = torch.exp(log_dt)
        Lam_bar = torch.exp(dt * Lam)
        B_bar = ((Lam_bar - 1.0) / Lam)[:, None] * Bmat
        Bu = torch.einsum("bld,pd->blp", x + 0j, B_bar)
        h = torch.zeros_like(Bu[:, 0, :])
        hs = []
        for t in range(L):
            h = Lam_bar[None, :] * h + Bu[:, t, :]
            hs.append(h)
        hseq = torch.stack(hs, 1)
        y = 2.0 * torch.einsum("blp,dp->bld", hseq, Cmat).real + x * Dskip[None, None, :]
        return y

    def _B_ref(x, W_gate, W_up, W_down):
        gate = torch.einsum("bsd,df->bsf", x, W_gate)
        up = torch.einsum("bsd,df->bsf", x, W_up)
        gate = gate * (lambda x, dt: x.to(dt))(gate > 0, gate.dtype)
        h = gate * up
        return torch.einsum("bsf,fd->bsd", h, W_down)

    x = A_x
    g = _sigmoid((x * gate_w).sum(-1, keepdims=True))
    a = _A_ref(x, A_Lambda_re, A_Lambda_im, A_B_re, A_B_im, A_C_re, A_C_im, A_log_dt, A_Dskip)
    b = _B_ref(x, B_W_gate, B_W_up, B_W_down)
    return g * a + (1 - g) * b
```

```python
L, D, F, P = 2048, 576, 4608, 576
XROW = 1152
WROW = 9216
HS = 181 * 1024
WS_H = 0
WS_CT = 0x1800000
WS_G = 0x1A00000
WS_E = 0x1A10000
WS_P = 0x2000000
WS_SIZE = 0x4000000
OOB = 0x40000000
LOG2E = 1.4426950408889634
INV2PI = 0.15915494309189535
import struct
def f2u(x):
    return struct.unpack('<I', struct.pack('<f', x))[0]
def fhex(x):
    return '0x%08x' % f2u(x)
```

```python
import re

def regs(spec):
    if spec is None:
        return []
    if isinstance(spec, (list, tuple, set)):
        out = []
        for s in spec:
            out += regs(s)
        return out
    m = re.fullmatch(r'([vas])\[(\d+):(\d+)\]', spec)
    if m:
        return [f'{m.group(1)}{i}' for i in range(int(m.group(2)), int(m.group(3)) + 1)]
    if re.fullmatch(r'[vas]\d+', spec):
        return [spec]
    if spec == 'vcc':
        return ['vcc']
    if spec in ('m0', 'exec', 'scc'):
        return [spec]
    return []

def R(p, lo, n=1):
    return f'{p}{lo}' if n == 1 else f'{p}[{lo}:{lo + n - 1}]'

class Ins:
    __slots__ = ('text', 'defs', 'uses', 'kind', 'after', 'cuse', 'weight', 'note')
    def __init__(self, text, defs=(), uses=(), kind='valu', after=(), cuse=(), weight=None):
        self.text = text
        self.defs = regs(list(defs)) if defs else []
        self.uses = regs(list(uses)) if uses else []
        self.kind = kind
        self.after = list(after)
        self.cuse = regs(list(cuse)) if cuse else []
        self.weight = weight
        self.note = None

VM_KINDS = ('vload', 'vstore', 'dma', 'vatomic')
LG_KINDS = ('dsread', 'dswrite', 'dsperm')

class Emitter:
    def __init__(self):
        self.lines = []
        self.reset_state()
        self.ninstr = 0
    def reset_state(self):
        self.vm_seq = {}
        self.lg_seq = {}
        self.vm_n = 0; self.lg_n = 0
        self.vm_done = 0; self.lg_done = 0
        self.pend = {}
        self.hist = []
    def raw(self, text):
        self.lines.append(text)
    def label(self, name):
        self.lines.append(f'{name}:')
    def comment(self, t):
        self.lines.append(f'; {t}')
    def _wait(self, vm=None, lg=None):
        parts = []
        if vm is not None and vm > self.vm_done:
            n = min(self.vm_n - vm, 63)
            parts.append(f'vmcnt({n})')
            self.vm_done = max(self.vm_done, self.vm_n - n)
        if lg is not None and lg > self.lg_done:
            n = min(self.lg_n - lg, 15)
            parts.append(f'lgkmcnt({n})')
            self.lg_done = max(self.lg_done, self.lg_n - n)
        if parts:
            self._put(Ins('s_waitcnt ' + ' '.join(parts), kind='wait'))
    def wait_all(self, vm=True, lg=True):
        parts = []
        if vm: parts.append('vmcnt(0)'); self.vm_done = self.vm_n
        if lg: parts.append('lgkmcnt(0)'); self.lg_done = self.lg_n
        self._put(Ins('s_waitcnt ' + ' '.join(parts), kind='wait'))
    def wait_for(self, inss):
        vm = lg = None
        for d in inss:
            if id(d) in self.vm_seq:
                vm = max(vm or 0, self.vm_seq[id(d)] + 1)
            elif id(d) in self.lg_seq:
                lg = max(lg or 0, self.lg_seq[id(d)] + 1)
            else:
                raise RuntimeError('dependency not emitted yet: ' + d.text)
        self._wait(vm, lg)
    def _need_states(self, ins):
        need = 0
        du = set(ins.defs) | set(ins.uses)
        uses = set(ins.uses); defs = set(ins.defs)
        isvalu = ins.kind in ('valu', 'trans')
        ismem = ins.kind in VM_KINDS + LG_KINDS
        t = ins.text
        for dist, p in enumerate(reversed(self.hist)):
            pd = set(p.defs)
            req = 0
            pvalu = p.kind in ('valu', 'trans')
            if p.kind == 'mfma':
                if ins.kind == 'mfma':
                    ab = uses - set(ins.cuse)
                    if pd & ab: req = max(req, 8)
                    if pd & set(ins.cuse) and set(p.defs) != set(ins.cuse): req = max(req, 6)
                    if pd & defs and set(p.defs) != defs: req = max(req, 6)
                elif (isvalu or ismem) and (pd & du):
                    req = max(req, 8)
                if isvalu and (set(p.cuse) & defs): req = max(req, 3)
            if pvalu:
                if ins.kind == 'mfma' and (pd & uses): req = max(req, 2)
                if isvalu and any(r[0] == 's' or r == 'vcc' for r in pd & uses): req = max(req, 2)
                if ins.kind in VM_KINDS and any(r[0] == 's' for r in pd & uses): req = max(req, 5)
                if isvalu and (pd & uses):
                    if t.startswith('v_readfirstlane') or t.startswith('v_readlane'): req = max(req, 1)
                    if '_dpp' in t or 'row_' in t or 'quad_perm' in t or t.startswith('v_permlane'): req = max(req, 2)
                    if p.kind == 'trans' and ins.kind != 'trans': req = max(req, 1)
                if p.kind == 'trans' and ismem and (pd & uses): req = max(req, 1)
                if t.startswith('v_readlane') or t.startswith('v_writelane'):
                    if any(r[0] == 's' for r in pd & uses): req = max(req, 4)
                if 'exec' in pd and (isvalu or ins.kind == 'mfma' or ismem): req = max(req, 5)
                if ins.kind == 'salu' and any(r[0] == 's' or r == 'vcc' for r in pd & uses): req = max(req, 2)
                if ins.kind == 'branch' and any(r == 'vcc' for r in pd & uses): req = max(req, 5)
            if p.kind == 'salu':
                if 'm0' in pd and ins.kind == 'dma': req = max(req, 1)
                if 'exec' in pd and ins.kind == 'mfma': req = max(req, 4)
            if p.kind in ('vstore', 'vatomic') and ('x4' in p.text or 'x3' in p.text):
                if (isvalu or ins.kind in ('vload', 'dsread')) and (set(p.uses) & defs):
                    req = max(req, 2)
            if req > dist:
                need = max(need, req - dist)
        return need
    def _put(self, ins):
        self.lines.append('  ' + ins.text)
        self.ninstr += 1
        n = 1
        m = re.match(r's_nop (\d+)', ins.text)
        if m: n = int(m.group(1)) + 1
        for k in range(n):
            self.hist.append(ins if k == 0 else Ins('', kind='wait'))
        if len(self.hist) > 24:
            self.hist = self.hist[-24:]
    def emit(self, ins):
        if isinstance(ins, (list, tuple)):
            for i in ins: self.emit(i)
            return ins
        if callable(ins):
            ins(self); return ins
        vm = lg = None
        for r in set(ins.uses) | set(ins.defs):
            pe = self.pend.get(r)
            if pe:
                if pe[0] == 'vm': vm = max(vm or 0, pe[1] + 1)
                else: lg = max(lg or 0, pe[1] + 1)
        for d in ins.after:
            if id(d) in self.vm_seq: vm = max(vm or 0, self.vm_seq[id(d)] + 1)
            elif id(d) in self.lg_seq: lg = max(lg or 0, self.lg_seq[id(d)] + 1)
            else: raise RuntimeError('dependency not emitted yet: ' + d.text + ' for ' + ins.text)
        self._wait(vm, lg)
        need = self._need_states(ins)
        while need > 0:
            k = min(need, 16)
            self._put(Ins(f's_nop {k - 1}', kind='wait'))
            need -= k
        self._put(ins)
        for r in ins.defs:
            self.pend.pop(r, None)
        if ins.kind in VM_KINDS:
            self.vm_seq[id(ins)] = self.vm_n
            if ins.kind in ('vload', 'vatomic'):
                for r in ins.defs: self.pend[r] = ('vm', self.vm_n)
            self.vm_n += 1
        elif ins.kind in LG_KINDS:
            self.lg_seq[id(ins)] = self.lg_n
            if ins.kind in ('dsread', 'dsperm'):
                for r in ins.defs: self.pend[r] = ('lg', self.lg_n)
            self.lg_n += 1
        self._keep = getattr(self, '_keep', []); self._keep.append(ins)
        return ins
    def text(self):
        return '\n'.join(self.lines) + '\n'

def V(text, d, u, kind='valu'):
    return Ins(text, defs=[d] if isinstance(d, str) else d, uses=u, kind=kind)
def _srcs(*a):
    return [x for x in a if isinstance(x, str)]
def v_op2(op, d, a, b):
    k = 'trans' if False else 'valu'
    return Ins(f'{op} {d}, {a}, {b}', defs=[d], uses=_srcs(a, b), kind=k)
def v_op1(op, d, a):
    k = 'trans' if op in ('v_exp_f32', 'v_log_f32', 'v_rcp_f32', 'v_rsq_f32', 'v_sqrt_f32', 'v_sin_f32', 'v_cos_f32') else 'valu'
    return Ins(f'{op} {d}, {a}', defs=[d], uses=_srcs(a), kind=k)
def v_op3(op, d, a, b, c):
    def strip(x):
        return x.lstrip('-') if isinstance(x, str) else x
    return Ins(f'{op} {d}, {a}, {b}, {c}', defs=[d], uses=_srcs(strip(a), strip(b), strip(c)), kind='valu')
def v_fmac(d, a, b):
    return Ins(f'v_fmac_f32 {d}, {a}, {b}', defs=[d], uses=_srcs(d, a, b))
def s_op(op, d, *a, scc=True):
    defs = [d] + (['scc'] if scc else [])
    return Ins(f'{op} {d}, ' + ', '.join(str(x) for x in a), defs=defs, uses=_srcs(*a), kind='salu')
def s_mov(d, a):
    return Ins(f's_mov_b32 {d}, {a}', defs=[d], uses=_srcs(a), kind='salu')
def s_cmp(op, a, b):
    return Ins(f'{op} {a}, {b}', defs=['scc'], uses=_srcs(a, b), kind='salu')
def s_csel(d, a, b, w=32):
    return Ins(f's_cselect_b{w} {d}, {a}, {b}', defs=[d], uses=_srcs(a, b) + ['scc'], kind='salu')
def v_cmp(op, d, a, b):
    return Ins(f'{op} {d}, {a}, {b}', defs=[d], uses=_srcs(a, b), kind='valu')
def v_cnd(d, a, b, mask='vcc'):
    return Ins(f'v_cndmask_b32 {d}, {a}, {b}, {mask}', defs=[d], uses=_srcs(a, b, mask), kind='valu')
def mfma(d, a, b, c):
    cu = [c] if isinstance(c, str) else []
    return Ins(f'v_mfma_f32_16x16x32_bf16 {d}, {a}, {b}, {c}', defs=[d], uses=[a, b] + cu, kind='mfma', cuse=cu)
def _off(o):
    return f' offset:{o}' if o else ''
def buf_load(w, d, voff, srd, soff, off=0, flags=''):
    op = {1: 'dword', 2: 'dwordx2', 4: 'dwordx4', 'u16': 'ushort'}[w]
    fl = (' ' + flags) if flags else ''
    return Ins(f'buffer_load_{op} {d}, {voff}, {srd}, {soff} offen{_off(off)}{fl}', defs=[d],
               uses=_srcs(voff, srd, soff), kind='vload')
def buf_dma(voff, srd, soff, off=0, flags=''):
    fl = (' ' + flags) if flags else ''
    return Ins(f'buffer_load_dwordx4 {voff}, {srd}, {soff} offen{_off(off)}{fl} lds', defs=[],
               uses=_srcs(voff, srd, soff) + ['m0'], kind='dma')
def buf_store(w, s, voff, srd, soff, off=0, flags=''):
    op = {1: 'dword', 2: 'dwordx2', 4: 'dwordx4', 'u16': 'short', 'u16hi': 'short_d16_hi', 'u8': 'byte'}[w]
    fl = (' ' + flags) if flags else ''
    return Ins(f'buffer_store_{op} {s}, {voff}, {srd}, {soff} offen{_off(off)}{fl}', defs=[],
               uses=_srcs(s, voff, srd, soff), kind='vstore')
def ds_read(op, d, addr, off=0):
    return Ins(f'{op} {d}, {addr}{_off(off)}', defs=[d], uses=[addr], kind='dsread')
def ds_write(op, addr, s, off=0):
    return Ins(f'{op} {addr}, {s}{_off(off)}', defs=[], uses=[addr, s], kind='dswrite')
def ds_bperm(d, addr, s):
    return Ins(f'ds_bpermute_b32 {d}, {addr}, {s}', defs=[d], uses=[addr, s], kind='dsperm')
def barrier(after=()):
    return Ins('s_barrier', kind='barrier', after=after)
```

```python
from core import *
from cfg import *

S_X, S_W, S_B, S_WS, S_DBG, S_P0, S_P1 = 4, 8, 12, 16, 20, 24, 28
def srd(n): return f's[{n}:{n+3}]'
sW, sMB, sSG, sI, sKG, sLDSW, sLDSB, sCT = 's32', 's33', 's34', 's35', 's36', 's37', 's38', 's39'
T0, T20 = 40, 58
sT = lambda i: f's{T0+i}'
sT2 = lambda i: f's{T20+i}'
sMW1, sMW2, sMW3 = 's76', 's77', 's78'
sH = 's79'
sA, sB_, sC, sD_, sE, sF = 's80', 's81', 's82', 's83', 's84', 's85'
sFM0, sFM1 = 's86', 's87'
sK = 's88'
sJ = 's89'
PL = 92
sHB = 's98'
sX1 = 's99'

vLane = 'v1'
vWa = ['v2', 'v3']; vWb = ['v4', 'v5']
vBr = ['v6', 'v7']
vDW, vDB, vHo = 'v8', 'v9', 'v10'
vEw, vEr, vTw, vTr = 'v11', 'v12', 'v13', 'v14'
vEo, vB16, vB32 = 'v15', 'v16', 'v17'
vM1, vM2, vNq, vNqw = 'v18', 'v19', 'v20', 'v21'
vEst, vFl, vFr = 'v22', 'v23', 'v24'
vU0, vU1, vU2 = 'v25', 'v26', 'v27'
vXo = ['v28', 'v29', 'v30', 'v31']
BUF = {'X': 32, 'Y': 96}
WF = 160
XV = 176
TMP = 208

RING_STAGE = 24576
NRING = 5
LDS_TS = NRING * RING_STAGE
LDS_ES = LDS_TS + 4 * 4608
LDS_JUNK = LDS_ES + 1024
LDS_K1 = LDS_JUNK + 1024
HALF = 61440

def xfrag(slot, tt):
    idx = slot * 4 + tt
    return f'a[{idx*4}:{idx*4+3}]' if slot < 16 else f'v[{XV+(idx-64)*4}:{XV+(idx-64)*4+3}]'
def acc(buf, tile, mat, tt, r=None):
    b = BUF[buf] + tile * 32 + mat * 16 + tt * 4
    return f'v[{b}:{b+3}]' if r is None else f'v{b+r}'
def ael(buf, tile, mat, k):
    return f'v{BUF[buf] + tile*32 + mat*16 + k}'
def build_srd(n, nbytes, lo=None, hi=None):
    o = []
    if lo is not None: o.append(s_mov(f's{n}', lo))
    o += [s_op('s_and_b32', f's{n+1}', hi if hi is not None else f's{n+1}', 0xffff),
          s_mov(f's{n+2}', nbytes), s_mov(f's{n+3}', 0x20000)]
    return o
def cexp(dr, di, n, zr2, zi2, t0, t1, mask=None):
    out = []
    if n == 1.0:
        out += [v_op1('v_exp_f32', dr, zr2), v_op1('v_fract_f32', t1, zi2)]
    else:
        nn = n if isinstance(n, str) else fhex(n)
        out += [v_op2('v_mul_f32', t0, nn, zr2), v_op2('v_mul_f32', t1, nn, zi2),
                v_op1('v_exp_f32', dr, t0), v_op1('v_fract_f32', t1, t1)]
    if mask: out += [v_op2('v_mul_f32', dr, dr, mask)]
    out += [v_op1('v_cos_f32', t0, t1), v_op1('v_sin_f32', t1, t1),
            v_op2('v_mul_f32', di, dr, t1), v_op2('v_mul_f32', dr, dr, t0)]
    return out
def cfma(dr, di, ar, ai, br, bi, cr, ci):
    return [v_op3('v_fma_f32', dr, ar, br, cr), v_op3('v_fma_f32', di, ar, bi, ci),
            v_op3('v_fma_f32', dr, '-' + ai, bi, dr), v_op3('v_fma_f32', di, ai, br, di)]
def sload(em, dst, n, off):
    suf = {2: 'x2', 4: 'x4'}[n]
    em.raw(f'  s_load_dword{suf} s[{dst}:{dst+n-1}], s[0:1], {off}')

def g_job_loads(E):
    t = TMP
    E(s_op('s_lshl_b32', sA, 's2', 3)); E(s_op('s_lshl_b32', sB_, sW, 1)); E(s_op('s_add_u32', sA, sA, sB_))
    E(v_op2('v_lshrrev_b32', vU0, 5, vLane)); E(v_op2('v_add_u32', vU0, sA, vU0))
    E(v_op2('v_and_b32', vU1, 31, vLane)); E(v_op2('v_lshlrev_b32', vU1, 2, vU1))
    E(s_mov(sK, XROW)); E(v_op2('v_mul_lo_u32', vU2, vU0, sK)); E(v_op2('v_add_u32', vU2, vU2, vU1))
    for kk in range(9):
        E(buf_load(1, f'v{t+kk}', vU2, srd(S_X), 0, off=kk * 128))
        E(buf_load(1, f'v{t+9+kk}', vU1, srd(S_P0), 0, off=kk * 128))
def g_job_compute():
    t = TMP; o = []
    a0, a1, x0, x1, g0, g1 = (f'v{t+18+n}' for n in range(6))
    o += [v_op1('v_mov_b32', a0, 0), v_op1('v_mov_b32', a1, 0)]
    for kk in range(9):
        xv, gv = f'v{t+kk}', f'v{t+9+kk}'
        o += [v_op2('v_lshlrev_b32', x0, 16, xv), v_op2('v_and_b32', x1, '0xffff0000', xv),
              v_op2('v_lshlrev_b32', g0, 16, gv), v_op2('v_and_b32', g1, '0xffff0000', gv),
              v_op2('v_mul_f32', x0, x0, g0), v_op2('v_mul_f32', x1, x1, g1),
              v_op3('v_cvt_pk_bf16_f32', x0, x0, x1, None)]
        o[-1] = Ins(f'v_cvt_pk_bf16_f32 {x0}, {x0}, {x1}', defs=[x0], uses=[x0, x1])
        o += [v_op2('v_lshlrev_b32', g0, 16, x0), v_op2('v_and_b32', g1, '0xffff0000', x0),
              v_op2('v_add_f32', a0, a0, g0), v_op2('v_add_f32', a1, a1, g1)]
    o += [v_op2('v_add_f32', a0, a0, a1)]
    for m in (1, 2, 4, 8, 16):
        o += [Ins(f'ds_swizzle_b32 {x0}, {a0} offset:{(m << 10) | 0x1f}', defs=[x0], uses=[a0], kind='dsperm'),
              v_op2('v_add_f32', a0, a0, x0)]
    cvt = lambda d, s: Ins(f'v_cvt_pk_bf16_f32 {d}, {s}, {s}', defs=[d], uses=[s])
    o += [cvt(a0, a0), v_op2('v_lshlrev_b32', a0, 16, a0),
          v_op2('v_mul_f32', a0, fhex(-LOG2E), a0), v_op1('v_exp_f32', a0, a0),
          v_op2('v_add_f32', a0, 1.0, a0), v_op1('v_rcp_f32', a0, a0),
          cvt(a0, a0), v_op2('v_lshlrev_b32', a0, 16, a0),
          v_op2('v_lshlrev_b32', x0, 2, vU0), v_op2('v_add_u32', x0, WS_G, x0),
          v_op2('v_and_b32', x1, 31, vLane), v_cmp('v_cmp_eq_u32', 'vcc', 0, x1),
          v_op1('v_mov_b32', x1, OOB), v_cnd(x0, x1, x0),
          buf_store(1, a0, x0, srd(S_WS), 0)]
    return o

def prologue(em):
    E = em.emit
    E(s_cmp('s_cmp_ge_u32', 's2', 256))
    em.raw('  s_cbranch_scc1 K1_EXIT')
    sload(em, S_X, 2, 0); sload(em, S_WS, 2, 128); sload(em, S_DBG, 2, 120); sload(em, S_P0, 2, 104)
    sload(em, 80, 4, 80); sload(em, 84, 4, 24); sload(em, PL, 4, 8); sload(em, PL + 4, 2, 56)
    E(v_op2('v_and_b32', vLane, 63, 'v0'))
    E(v_op2('v_lshrrev_b32', vU0, 6, 'v0'))
    E(s_op('s_and_b32', 's90', 's2', 7))
    E(s_op('s_lshr_b32', 's91', 's2', 3))
    E(Ins(f'v_readfirstlane_b32 {sW}, {vU0}', defs=[sW], uses=[vU0]))
    E(s_op('s_lshr_b32', sH, 's90', 2))
    E(s_op('s_and_b32', sSG, 's90', 3))
    E(s_op('s_lshr_b32', sX1, 's91', 3))
    E(s_op('s_and_b32', sI, 's91', 7))
    E(s_op('s_lshl_b32', sMB, sH, 2)); E(s_op('s_add_u32', sMB, sMB, sX1))
    E(s_op('s_lshl_b32', sJ, sX1, 1)); E(s_op('s_add_u32', sJ, sJ, sI)); E(s_op('s_add_u32', sJ, sJ, sH))
    E(s_op('s_sub_u32', sK, sJ, 9)); E(s_cmp('s_cmp_ge_u32', sJ, 9)); E(s_csel(sJ, sK, sJ))
    E(s_op('s_lshl_b32', sJ, sJ, 1))
    em.raw('  s_waitcnt lgkmcnt(0)')
    E(build_srd(S_X, L * XROW)); E(build_srd(S_WS, WS_SIZE)); E(build_srd(S_DBG, 256)); E(build_srd(S_P0, D * 2))
    E(s_op('s_and_b32', sK, sW, 1)); E(s_cmp('s_cmp_eq_u32', sK, 0))
    E(s_csel(f's{S_W}', 's80', 's82')); E(s_csel(f's{S_W+1}', 's81', 's83'))
    E(s_csel(f's{S_B}', 's84', 's86')); E(s_csel(f's{S_B+1}', 's85', 's87'))
    E(build_srd(S_W, D * WROW)); E(build_srd(S_B, P * XROW))
    g_job_loads(E)
    for i in range(18):
        E(s_op('s_mul_i32', sT(i), sJ, 32 * WROW, scc=False))
        E(s_op('s_lshl_b32', sT2(i), sJ, 6))
        E(s_op('s_add_u32', sJ, sJ, 1)); E(s_cmp('s_cmp_ge_u32', sJ, 18)); E(s_csel(sJ, 0, sJ))
    E(s_op('s_lshl_b32', sA, sI, 2)); E(s_op('s_mul_i32', sB_, sI, 5, scc=False)); E(s_op('s_sub_u32', sB_, sB_, 4))
    E(s_cmp('s_cmp_lt_u32', sI, 4)); E(s_csel(sA, sA, sB_))
    E(s_op('s_mul_i32', sB_, sSG, 45, scc=False)); E(s_op('s_add_u32', sKG, sB_, sA))
    E(s_op('s_mul_i32', sB_, sSG, 36, scc=False)); E(s_op('s_add_u32', sA, sA, sB_))
    E(s_op('s_lshl_b32', sA, sA, 6))
    E(v_op2('v_lshrrev_b32', vU1, 2, vLane))
    E(v_op2('v_lshrrev_b32', vU2, 5, vLane)); E(v_op2('v_lshlrev_b32', vU2, 1, vU2))
    E(v_op2('v_and_b32', vDW, 3, vLane)); E(v_op2('v_xor_b32', vDW, vDW, vU2)); E(v_op2('v_lshlrev_b32', vDW, 4, vDW))
    E(s_op('s_lshr_b32', sB_, sW, 1)); E(s_op('s_lshl_b32', sC, sB_, 4))
    E(v_op2('v_add_u32', vU1, sC, vU1)); E(s_mov(sK, WROW)); E(v_op2('v_mul_lo_u32', vU1, vU1, sK))
    E(v_op2('v_add_u32', vDW, vDW, vU1)); E(v_op2('v_add_u32', vDW, sA, vDW))
    E(s_op('s_and_b32', sC, sW, 1)); E(s_op('s_lshl_b32', sC, sC, 1)); E(s_op('s_add_u32', sC, sC, sB_))
    E(s_op('s_lshl_b32', sLDSW, sC, 10)); E(s_op('s_lshl_b32', sLDSB, sW, 10))
    E(s_op('s_lshl_b32', sA, sI, 1)); E(s_cmp('s_cmp_lt_u32', sI, 4)); E(s_csel(sA, sA, 8))
    E(s_op('s_mul_i32', sB_, sSG, 9, scc=False)); E(s_op('s_add_u32', sCT, sA, sB_))
    E(s_op('s_lshr_b32', sA, sW, 1)); E(s_cmp('s_cmp_lt_u32', sI, 4)); E(s_csel(sA, sA, 0))
    E(s_op('s_add_u32', sA, sA, sCT)); E(s_op('s_lshl_b32', sA, sA, 4))
    E(v_op2('v_and_b32', vU1, 15, vLane)); E(v_op2('v_add_u32', vU1, sA, vU1))
    E(s_mov(sK, XROW)); E(v_op2('v_mul_lo_u32', vDB, vU1, sK))
    E(v_op2('v_lshrrev_b32', vU2, 4, vLane)); E(v_op2('v_lshlrev_b32', vU2, 4, vU2)); E(v_op2('v_add_u32', vDB, vDB, vU2))
    E(s_op('s_lshl_b32', sA, sMB, 8)); E(s_op('s_lshl_b32', sB_, sW, 6)); E(s_op('s_add_u32', sA, sA, sB_))
    E(v_op2('v_and_b32', vU1, 12, vLane)); E(v_op2('v_lshlrev_b32', vU1, 2, vU1))
    E(v_op2('v_and_b32', vXo[0], 3, vLane)); E(v_op2('v_add_u32', vU1, vU1, vXo[0])); E(v_op2('v_add_u32', vU1, sA, vU1))
    E(v_op2('v_mul_lo_u32', vU1, vU1, sK)); E(v_op2('v_add_u32', vXo[0], vU1, vU2))
    for tt in range(1, 4):
        E(v_op2('v_add_u32', vXo[tt], tt * 4 * XROW, vXo[0]))
    q, i16 = vU1, vU2
    E(v_op2('v_lshrrev_b32', q, 4, vLane)); E(v_op2('v_and_b32', i16, 15, vLane))
    t0, t1 = f'v{TMP+30}', f'v{TMP+31}'
    E(v_op2('v_lshrrev_b32', t0, 1, q)); E(v_op2('v_lshlrev_b32', vWa[0], 10, t0))
    E(v_op2('v_and_b32', t0, 1, q)); E(v_op2('v_lshlrev_b32', t1, 9, t0))
    E(v_op2('v_add_u32', vWa[0], vWa[0], t1))
    E(v_op2('v_lshrrev_b32', t1, 2, i16)); E(v_op2('v_lshlrev_b32', t1, 6, t1)); E(v_op2('v_add_u32', vWa[0], vWa[0], t1))
    E(v_op2('v_lshlrev_b32', t0, 1, t0))
    E(v_op2('v_lshrrev_b32', t1, 1, i16)); E(v_op2('v_and_b32', t1, 1, t1)); E(v_op2('v_xor_b32', t1, t1, t0))
    E(v_op2('v_lshlrev_b32', t1, 4, t1)); E(v_op2('v_add_u32', vWa[0], vWa[0], t1))
    E(v_op2('v_and_b32', t1, 1, i16)); E(v_op2('v_lshlrev_b32', t1, 3, t1)); E(v_op2('v_add_u32', vWa[0], vWa[0], t1))
    E(v_op2('v_xor_b32', vWb[0], 32, vWa[0]))
    E(v_op2('v_add_u32', vWa[1], HALF, vWa[0])); E(v_op2('v_add_u32', vWb[1], HALF, vWb[0]))
    E(v_op2('v_lshlrev_b32', vBr[0], 4, vLane)); E(v_op2('v_add_u32', vBr[1], HALF, vBr[0]))
    E(s_op('s_lshl_b32', sA, sMB, 4)); E(s_op('s_lshl_b32', sB_, sW, 2)); E(s_op('s_add_u32', sA, sA, sB_))
    E(s_op('s_mul_i32', sA, sA, HS, scc=False)); E(v_op2('v_add_u32', vHo, sA, vBr[0]))

def ssm_setup(em):
    E = em.emit
    q, p = vU1, vU2
    t0, t1 = f'v{TMP+30}', f'v{TMP+31}'
    E(v_op2('v_lshrrev_b32', q, 4, vLane)); E(v_op2('v_and_b32', p, 15, vLane))
    E(s_op('s_lshl_b32', sA, sW, 7)); E(s_op('s_add_u32', sA, sA, LDS_ES))
    E(v_op2('v_lshlrev_b32', t0, 3, p)); E(v_op2('v_add_u32', vEr, LDS_ES, t0)); E(v_op2('v_add_u32', t0, sA, t0))
    E(v_op2('v_lshlrev_b32', t1, 3, vLane)); E(v_op2('v_add_u32', t1, LDS_JUNK, t1))
    E(v_cmp('v_cmp_eq_u32', 'vcc', 3, q)); E(v_cnd(vEw, t1, t0))
    E(s_op('s_mul_i32', sA, sW, 4608, scc=False)); E(s_op('s_add_u32', sA, sA, LDS_TS))
    E(v_op2('v_mul_u32_u24', t0, 144, p)); E(v_op2('v_lshlrev_b32', t1, 5, q)); E(v_op2('v_add_u32', t0, t0, t1))
    E(v_op2('v_add_u32', vTw, sA, t0))
    E(v_op2('v_lshlrev_b32', t0, 2, q)); E(v_op2('v_lshrrev_b32', t1, 2, p)); E(v_op2('v_add_u32', t0, t0, t1))
    E(v_op2('v_mul_u32_u24', t0, 144, t0)); E(v_op2('v_and_b32', t1, 3, p)); E(v_op2('v_lshlrev_b32', t1, 5, t1))
    E(v_op2('v_add_u32', t0, t0, t1)); E(v_op2('v_add_u32', vTr, sA, t0))
    E(s_op('s_lshl_b32', sA, sCT, 10)); E(s_op('s_add_u32', sA, sA, WS_E))
    E(v_op2('v_lshlrev_b32', t0, 3, p)); E(v_op2('v_add_u32', vEo, sA, t0))
    E(s_op('s_lshl_b32', sA, sMB, 7)); E(s_cmp('s_cmp_eq_u32', sW, 0)); E(s_csel(sA, sA, OOB))
    E(v_op2('v_add_u32', vEst, sA, vEo))
    E(v_op2('v_add_u32', t0, 48, vLane)); E(v_op2('v_and_b32', t0, 63, t0)); E(v_op2('v_lshlrev_b32', vB16, 2, t0))
    E(v_op2('v_add_u32', t0, 32, vLane)); E(v_op2('v_and_b32', t0, 63, t0)); E(v_op2('v_lshlrev_b32', vB32, 2, t0))
    E(v_cmp('v_cmp_le_u32', 'vcc', 1, q)); E(v_op1('v_mov_b32', t0, 0)); E(v_op1('v_mov_b32', t1, 1.0)); E(v_cnd(vM1, t0, t1))
    E(v_cmp('v_cmp_le_u32', 'vcc', 2, q)); E(v_cnd(vM2, t0, t1))
    E(v_op2('v_lshlrev_b32', t0, 4, q)); E(v_op1('v_cvt_f32_u32', vNq, t0))
    E(s_op('s_lshl_b32', sA, sW, 6)); E(v_op2('v_add_u32', t0, sA, t0)); E(v_op1('v_cvt_f32_u32', vNqw, t0))
    for n, sm in ((1, sMW1), (2, sMW2), (3, sMW3)):
        E(s_cmp('s_cmp_eq_u32', sW, n)); E(s_csel(sm, '0x3f800000', 0))
    E(s_op('s_mul_i32', sA, sSG, 5, scc=False)); E(s_op('s_add_u32', sA, sA, sI)); E(s_op('s_lshl_b32', sA, sA, 3))
    E(v_op1('v_mov_b32', vFr, sA))
    E(s_op('s_add_u32', sA, sA, sMB)); E(s_cmp('s_cmp_eq_u32', sW, 0)); E(s_csel(sA, sA, OOB))
    E(v_op1('v_mov_b32', t0, sA)); E(v_op1('v_mov_b32', t1, OOB))
    E(v_cmp('v_cmp_eq_u32', 'vcc', 0, vLane)); E(v_cnd(vFl, t1, t0))
    E(s_op('s_lshl_b32', sA, sMB, 3))
    E(Ins(f's_lshl_b64 s[86:87], 1, {sA}', defs=['s[86:87]', 'scc'], uses=[sA], kind='salu'))
    E(Ins('s_sub_u32 s86, s86, 1', defs=['s86', 'scc'], uses=['s86'], kind='salu'))
    E(Ins('s_subb_u32 s87, s87, 0', defs=['s87', 'scc'], uses=['s87', 'scc'], kind='salu'))
    E(s_op('s_and_b32', sFM0, sFM0, '0x01010101')); E(s_op('s_and_b32', sFM1, sFM1, '0x01010101'))

def ssm_regs(t):
    b = TMP + t * 8
    return dict(zr=f'v{b}', zi=f'v{b+1}', a=f'v{b+2}', b=f'v{b+3}', pr=f'v{b+4}', pi=f'v{b+5}')
W = [f'v{TMP+16+n}' for n in range(24)]
def ssm_params(ntile):
    o = []
    for t in range(ntile):
        r = ssm_regs(t)
        o += [s_op('s_add_u32', sA, sCT, t), s_op('s_lshl_b32', sA, sA, 5),
              v_op2('v_and_b32', W[0], 15, vLane), v_op2('v_lshlrev_b32', W[0], 1, W[0]), v_op2('v_add_u32', W[0], sA, W[0])]
        for n in range(3):
            o += build_srd(S_P1, P * 2, f's{PL+2*n}', f's{PL+2*n+1}')
            o += [buf_load('u16', W[1 + n], W[0], srd(S_P1), 0)]
        lr, li, ld = W[1], W[2], W[3]
        o += [v_op2('v_lshlrev_b32', lr, 16, lr), v_op2('v_lshlrev_b32', li, 16, li), v_op2('v_lshlrev_b32', ld, 16, ld),
              v_op2('v_mul_f32', ld, fhex(LOG2E), ld), v_op1('v_exp_f32', ld, ld),
              Ins(f'v_cvt_pk_bf16_f32 {ld}, {ld}, {ld}', defs=[ld], uses=[ld]), v_op2('v_lshlrev_b32', ld, 16, ld),
              v_op2('v_mul_f32', lr, ld, lr), v_op2('v_mul_f32', li, ld, li),
              v_op2('v_mul_f32', r['zr'], fhex(LOG2E), lr), v_op2('v_mul_f32', r['zi'], fhex(INV2PI), li)]
        o += cexp(r['a'], r['b'], 1.0, r['zr'], r['zi'], W[4], W[5])
    return o
def ssm_stage1(buf, ntile):
    o = []; wr = []
    for t in range(ntile):
        r = ssm_regs(t); a, b = r['a'], r['b']
        hr, hi = ael(buf, t, 0, 0), ael(buf, t, 1, 0)
        pp = [(W[0], W[1]), (W[2], W[3])]
        for k in range(1, 16):
            nr, ni = pp[k & 1]
            o += cfma(nr, ni, a, b, hr, hi, ael(buf, t, 0, k), ael(buf, t, 1, k))
            hr, hi = nr, ni
        c1r, c1i, c2r, c2i = W[4], W[5], W[6], W[7]
        o += cexp(c1r, c1i, 16.0, r['zr'], r['zi'], W[8], W[9], vM1)
        o += cexp(c2r, c2i, 32.0, r['zr'], r['zi'], W[8], W[9], vM2)
        o += [ds_bperm(W[8], vB16, hr), ds_bperm(W[9], vB16, hi)]
        o += cfma(hr, hi, c1r, c1i, W[8], W[9], hr, hi)
        o += [ds_bperm(W[8], vB32, hr), ds_bperm(W[9], vB32, hi)]
        o += cfma(hr, hi, c2r, c2i, W[8], W[9], hr, hi)
        w_ = ds_write('ds_write_b64', vEw, f'v[{hr[1:]}:{hi[1:]}]', off=t * 512)
        o += [w_]; wr.append(w_)
        o += [ds_bperm(r['pr'], vB16, hr), ds_bperm(r['pi'], vB16, hi),
              v_op2('v_mul_f32', r['pr'], r['pr'], vM1), v_op2('v_mul_f32', r['pi'], r['pi'], vM1)]
    return o, wr
def ssm_stage2(ntile):
    o = []; st = []
    for t in range(ntile):
        r = ssm_regs(t)
        for w_ in range(4):
            o += [ds_read('ds_read_b64', f'v[{W[2*w_][1:]}:{W[2*w_+1][1:]}]', vEr, off=t * 512 + w_ * 128)]
        lr, li = W[8], W[9]
        o += cexp(lr, li, 64.0, r['zr'], r['zi'], W[10], W[11])
        o += cfma(W[2], W[3], lr, li, W[0], W[1], W[2], W[3])
        o += cfma(W[4], W[5], lr, li, W[2], W[3], W[4], W[5])
        o += cfma(W[6], W[7], lr, li, W[4], W[5], W[6], W[7])
        s_ = buf_store(2, f'v[{W[6][1:]}:{W[7][1:]}]', vEst, srd(S_WS), 0, off=t * 1024, flags='sc1')
        o += [s_]; st.append(s_)
        o += [v_op2('v_mul_f32', W[10], sMW1, W[0]), v_op2('v_mul_f32', W[11], sMW1, W[1]),
              v_op3('v_fma_f32', W[10], sMW2, W[2], W[10]), v_op3('v_fma_f32', W[11], sMW2, W[3], W[11]),
              v_op3('v_fma_f32', W[10], sMW3, W[4], W[10]), v_op3('v_fma_f32', W[11], sMW3, W[5], W[11])]
        o += cexp(lr, li, vNq, r['zr'], r['zi'], W[12], W[13])
        o += cfma(r['pr'], r['pi'], lr, li, W[10], W[11], r['pr'], r['pi'])
    return o, st
def ssm_flag(stores):
    one = W[20]
    return [v_op1('v_mov_b32', one, 1),
            Ins(f'buffer_store_byte {one}, {vFl}, {srd(S_DBG)}, 0 offen sc1', uses=[one, vFl, srd(S_DBG)], kind='vstore', after=stores)]
_uid = [0]
def ssm_poll_issue():
    return buf_load(2, f'v[{W[22][1:]}:{W[23][1:]}]', vFr, srd(S_DBG), 0, flags='sc1')
def ssm_poll_check():
    def blk(em):
        _uid[0] += 1; u = _uid[0]
        lo, hi = W[22], W[23]
        em.emit(s_mov(sC, 0x40000))
        em.label(f'K1_POLL{u}')
        em.emit(Ins(f'v_readfirstlane_b32 {sA}, {lo}', defs=[sA], uses=[lo]))
        em.emit(Ins(f'v_readfirstlane_b32 {sB_}, {hi}', defs=[sB_], uses=[hi]))
        em.emit(s_op('s_and_b32', sA, sA, sFM0)); em.emit(s_op('s_and_b32', sB_, sB_, sFM1))
        em.emit(s_op('s_xor_b32', sA, sA, sFM0)); em.emit(s_op('s_xor_b32', sB_, sB_, sFM1))
        em.emit(s_op('s_or_b32', sA, sA, sB_))
        em.raw(f'  s_cbranch_scc0 K1_POLLED{u}')
        em.emit(s_op('s_sub_u32', sC, sC, 1))
        em.raw(f'  s_cbranch_scc1 K1_POLLED{u}')
        em.raw('  s_sleep 4')
        em.raw(f'  buffer_load_dwordx2 v[{lo[1:]}:{hi[1:]}], {vFr}, {srd(S_DBG)}, 0 offen sc1')
        em.raw('  s_waitcnt vmcnt(0)')
        em.raw(f'  s_branch K1_POLL{u}')
        em.label(f'K1_POLLED{u}')
    return blk
def ssm_stage3_loads(nt):
    o = []
    if nt == 2:
        o += [v_op2('v_lshrrev_b32', W[18], 4, vLane), v_op2('v_and_b32', W[18], 1, W[18]),
              v_op2('v_lshlrev_b32', W[18], 10, W[18]), v_op2('v_add_u32', W[18], W[18], vEo)]
        eo = W[18]
    else:
        eo = vEo
    for d in range(7, 0, -1):
        k = 7 - d
        o += [s_op('s_sub_u32', sA, sMB, d), s_op('s_lshl_b32', sB_, sA, 7), s_cmp('s_cmp_ge_u32', sMB, d), s_csel(sB_, sB_, OOB),
              buf_load(2, f'v[{W[2*k][1:]}:{W[2*k+1][1:]}]', eo, srd(S_WS), sB_, flags='sc1')]
    return o
def ssm_stage3_carry(nt):
    o = []
    lr, li, t0, t1 = W[14], W[15], W[16], W[17]
    r0 = ssm_regs(0)
    if nt == 2:
        r1 = ssm_regs(1)
        o += [v_op2('v_and_b32', t0, 16, vLane), [v_cmp('v_cmp_ne_u32', 'vcc', 0, t0),
              v_cnd(W[18], r0['zr'], r1['zr']), v_cnd(W[19], r0['zi'], r1['zi'])]]
        zr, zi = W[18], W[19]
    else:
        zr, zi = r0['zr'], r0['zi']
    o += cexp(lr, li, 256.0, zr, zi, t0, t1)
    for k in range(1, 7):
        o += cfma(W[2*k], W[2*k+1], lr, li, W[2*k-2], W[2*k-1], W[2*k], W[2*k+1])
    return o
def ssm_stage3(buf, t, nt, hsoff):
    r = ssm_regs(t); o = []
    lr, li, t0, t1 = W[14], W[15], W[16], W[17]
    cr, ci = W[12], W[13]
    if nt == 2:
        o += [v_op2('v_and_b32', t0, 15, vLane), v_op2('v_lshlrev_b32', t0, 2, t0)]
        if t: o += [v_op2('v_add_u32', t0, 64, t0)]
        o += [ds_bperm(W[0], t0, W[12]), ds_bperm(W[1], t0, W[13])]
        cr, ci = W[0], W[1]
    o += cexp(lr, li, vNqw, r['zr'], r['zi'], t0, t1)
    o += cfma(r['pr'], r['pi'], lr, li, cr, ci, r['pr'], r['pi'])
    hr, hi = r['pr'], r['pi']; a, b = r['a'], r['b']
    for k in range(16):
        ur, ui = ael(buf, t, 0, k), ael(buf, t, 1, k)
        o += cfma(ur, ui, a, b, hr, hi, ur, ui)
        hr, hi = ur, ui
    for mat in range(2):
        for m in range(8):
            d, s0, s1 = ael(buf, t, mat, m), ael(buf, t, mat, 2 * m), ael(buf, t, mat, 2 * m + 1)
            o += [Ins(f'v_cvt_pk_bf16_f32 {d}, {s0}, {s1}', defs=[d], uses=[s0, s1])]
        b0 = BUF[buf] + t * 32 + mat * 16
        o += [ds_write('ds_write_b128', vTw, f'v[{b0}:{b0+3}]', off=mat * 2304),
              ds_write('ds_write_b128', vTw, f'v[{b0+4}:{b0+7}]', off=mat * 2304 + 16)]
    for tt in range(4):
        b0 = BUF[buf] + t * 32 + (tt >> 1) * 16 + 8 + (tt & 1) * 4
        o += [ds_read('ds_read_b64_tr_b16', f'v[{b0}:{b0+1}]', vTr, off=tt * 8),
              ds_read('ds_read_b64_tr_b16', f'v[{b0+2}:{b0+3}]', vTr, off=tt * 8 + 2304)]
    for tt in range(4):
        b0 = BUF[buf] + t * 32 + (tt >> 1) * 16 + 8 + (tt & 1) * 4
        o += [s_op('s_add_u32', sA, hsoff, tt * HS + t * 1024),
              buf_store(4, f'v[{b0}:{b0+3}]', vHo, srd(S_WS), sA)]
    return o

def ffn_epilogue(buf, hsoff):
    o = []
    for tt in range(4):
        pk = [f'v{TMP+40+(tt&1)*4+n}' for n in range(4)]
        for tile in range(2):
            for r in range(4):
                g, u = acc(buf, tile, 0, tt, r), acc(buf, tile, 1, tt, r)
                o += [v_op2('v_max_f32', g, 0, g), v_op2('v_mul_f32', g, g, u)]
            for h in range(2):
                d, s0, s1 = pk[tile * 2 + h], acc(buf, tile, 0, tt, 2 * h), acc(buf, tile, 0, tt, 2 * h + 1)
                o += [Ins(f'v_cvt_pk_bf16_f32 {d}, {s0}, {s1}', defs=[d], uses=[s0, s1])]
        o += [s_op('s_add_u32', sA, hsoff, tt * HS),
              buf_store(4, f'v[{pk[0][1:]}:{pk[3][1:]}]', vHo, srd(S_WS), sA)]
    return o
```

```python
from core import *
from cfg import *
from k1 import *

def ct_job(em):
    E = em.emit
    b = 32
    v = lambda n: f'v{b+n}'
    E(s_op('s_lshl_b32', sA, sSG, 3)); E(s_op('s_add_u32', sA, sA, sMB)); E(s_op('s_mul_i32', sA, sA, 3, scc=False))
    E(s_op('s_add_u32', sA, sA, sI)); E(s_op('s_sub_u32', sA, sA, 5)); E(s_op('s_lshl_b32', sA, sA, 2)); E(s_op('s_add_u32', sA, sA, sW))
    E(s_cmp('s_cmp_ge_u32', sA, 324))
    em.raw('  s_cbranch_scc1 K1_EXIT')
    E(s_op('s_mul_i32', sB_, sA, 7282, scc=False)); E(s_op('s_lshr_b32', sB_, sB_, 16))
    E(s_op('s_mul_i32', sC, sB_, 9, scc=False)); E(s_op('s_sub_u32', sC, sA, sC))
    em.raw('  s_load_dwordx4 s[40:43], s[0:1], 40')
    em.raw('  s_waitcnt lgkmcnt(0)')
    E(build_srd(S_P0, D * XROW, 's40', 's41')); E(build_srd(S_P1, D * XROW, 's42', 's43'))
    E(s_op('s_lshl_b32', sC, sC, 6)); E(v_op2('v_add_u32', v(0), sC, vLane))
    E(s_mov(sK, XROW)); E(v_op2('v_mul_lo_u32', v(1), v(0), sK))
    E(s_op('s_lshl_b32', sD_, sB_, 5)); E(v_op2('v_add_u32', v(1), sD_, v(1)))
    E(buf_load(4, f'v[{b+4}:{b+7}]', v(1), srd(S_P0), 0)); E(buf_load(4, f'v[{b+8}:{b+11}]', v(1), srd(S_P0), 0, off=16))
    E(buf_load(4, f'v[{b+12}:{b+15}]', v(1), srd(S_P1), 0)); E(buf_load(4, f'v[{b+16}:{b+19}]', v(1), srd(S_P1), 0, off=16))
    E(s_op('s_mul_i32', sE, sB_, 32 * XROW, scc=False)); E(s_op('s_add_u32', sE, sE, WS_CT))
    E(v_op2('v_lshlrev_b32', v(2), 1, v(0))); E(v_op2('v_add_u32', v(2), sE, v(2)))
    E(v_op2('v_and_b32', v(20), 15, vLane)); E(v_op2('v_lshlrev_b32', v(20), 1, v(20))); E(v_op2('v_add_u32', v(20), sD_, v(20)))
    for n in range(3):
        E(build_srd(S_B, P * 2, f's{PL+2*n}', f's{PL+2*n+1}'))
        E(buf_load('u16', v(21 + n), v(20), srd(S_B), 0))
    lr, li, ld = v(21), v(22), v(23)
    zr, zi, ar, ai, t0, t1 = (v(24 + n) for n in range(6))
    E([v_op2('v_lshlrev_b32', lr, 16, lr), v_op2('v_lshlrev_b32', li, 16, li), v_op2('v_lshlrev_b32', ld, 16, ld),
       v_op2('v_mul_f32', ld, fhex(LOG2E), ld), v_op1('v_exp_f32', ld, ld),
       Ins(f'v_cvt_pk_bf16_f32 {ld}, {ld}, {ld}', defs=[ld], uses=[ld]), v_op2('v_lshlrev_b32', ld, 16, ld),
       v_op2('v_mul_f32', zr, ld, lr), v_op2('v_mul_f32', zi, ld, li),
       v_op2('v_mul_f32', zr, fhex(LOG2E), zr), v_op2('v_mul_f32', zi, fhex(INV2PI), zi)])
    E(cexp(ar, ai, 1.0, zr, zi, t0, t1))
    E([v_op2('v_add_f32', ar, -1.0, ar),
       v_op2('v_mul_f32', t0, lr, lr), v_op3('v_fma_f32', t0, li, li, t0), v_op1('v_rcp_f32', t0, t0),
       v_op2('v_add_f32', t0, t0, t0),
       v_op2('v_mul_f32', zr, ar, lr), v_op3('v_fma_f32', zr, ai, li, zr),
       v_op2('v_mul_f32', zi, ai, lr), v_op3('v_fma_f32', zi, '-' + ar, li, zi),
       v_op2('v_mul_f32', zr, zr, t0), v_op2('v_mul_f32', zi, zi, t0)])
    for p in range(16):
        E(Ins(f'v_readlane_b32 {sA}, {zr}, {p}', defs=[sA], uses=[zr]))
        E(Ins(f'v_readlane_b32 {sB_}, {zi}, {p}', defs=[sB_], uses=[zi]))
        cre, cim = f'v{b+4+(p>>1)}', f'v{b+12+(p>>1)}'
        c0, c1, d0, d1 = v(30), v(31), v(32 + 2 * (p & 1)), v(33 + 2 * (p & 1))
        if p & 1:
            E(v_op2('v_and_b32', c0, '0xffff0000', cre)); E(v_op2('v_and_b32', c1, '0xffff0000', cim))
        else:
            E(v_op2('v_lshlrev_b32', c0, 16, cre)); E(v_op2('v_lshlrev_b32', c1, 16, cim))
        E(v_op2('v_mul_f32', d0, sA, c0)); E(v_op3('v_fma_f32', d0, '-' + sB_, c1, d0))
        E(v_op2('v_mul_f32', d1, sA, c1)); E(v_op3('v_fma_f32', d1, sB_, c0, d1))
        E(Ins(f'v_cvt_pk_bf16_f32 {d0}, {d0}, -{d1}', defs=[d0], uses=[d0, d1]))
        E(s_mov(sC, p * XROW)); E(buf_store('u16', d0, v(2), srd(S_WS), sC))
        E(s_mov(sD_, (16 + p) * XROW)); E(buf_store('u16hi', d0, v(2), srd(S_WS), sD_))
```

```python
from core import *
from cfg import *
from k1 import *

def weight(it):
    if isinstance(it, (list, tuple)):
        return sum(weight(x) for x in it)
    if callable(it): return 2
    if it.weight is not None: return it.weight
    return {'salu': 0, 'wait': 0, 'dma': 2, 'vload': 2, 'vstore': 2, 'barrier': 0}.get(it.kind, 1)

class Filler:
    def __init__(self): self.q = []
    def add(self, items, at=0):
        for it in items: self.q.append((at, it))
    def take(self, em, gap, cap):
        while self.q and cap > 0 and self.q[0][0] <= gap:
            it = self.q[0][1]
            w = weight(it)
            if w > cap and cap < 2: break
            self.q.pop(0); em.emit(it); cap -= max(w, 0)
        return cap
    def flush(self, em):
        for _, it in self.q: em.emit(it)
        self.q = []

def bundle_scc(items):
    out = []; cur = []
    for it in items:
        if callable(it) or isinstance(it, list):
            if cur: out.append(cur); cur = []
            out.append(it); continue
        cur.append(it)
        if it.kind != 'salu':
            out.append(cur if len(cur) > 1 else cur[0]); cur = []
    if cur: out.append(cur)
    return out

def gen_type(em, tname, groups, late_job=None):
    E = em.emit
    NG = len(groups)
    nslot = 18 * NG
    has_ssm = any(g['k'] == 'S' for g in groups)
    dma = {}
    def dma_items(n):
        g, i = divmod(n, 18); st = n // 6
        base = (st % NRING) * RING_STAGE + (i % 6) * 4096
        if groups[g]['k'] == 'F':
            d = buf_dma(vDW, srd(S_W), sT(i)); m = s_op('s_add_u32', 'm0', sLDSW, base)
        else:
            d = buf_dma(vDB, srd(S_B), sT2(i)); m = s_op('s_add_u32', 'm0', sLDSB, base)
        dma[n] = d
        return [m, Ins('s_nop 0', kind='wait'), d]
    def xloads(i0):
        o = []
        for tt in range(4):
            for i in (i0, i0 + 1):
                o.append(buf_load(4, xfrag(i, tt), vXo[tt], srd(S_X), sT2(i)))
        return o
    frags = []
    for n in range(nslot):
        g = n // 18
        nt = groups[g].get('nt', 2)
        for tile in range(nt):
            for mat in range(2):
                frags.append((n, tile, mat))
    def frag_reads(F):
        n, tile, mat = frags[F]
        g, i = divmod(n, 18); st = n // 6
        base = (st % NRING) * RING_STAGE + (i % 6) * 4096
        b = WF + (F % 4) * 4
        if groups[g]['k'] == 'F':
            off = base + mat * 2048
            h = 1 if off >= HALF else 0
            a = (vWa if tile == 0 else vWb)[h]; off -= h * HALF
            return [ds_read('ds_read_b64_tr_b16', f'v[{b}:{b+1}]', a, off),
                    ds_read('ds_read_b64_tr_b16', f'v[{b+2}:{b+3}]', a, off + 256)]
        off = base + (tile * 2 + mat) * 1024
        h = 1 if off >= HALF else 0
        return [ds_read('ds_read_b128', f'v[{b}:{b+3}]', vBr[h], off - h * HALF)]
    if has_ssm: ssm_setup(em)
    for n in range(6): E(dma_items(n))
    E(xloads(0)); E(xloads(2))
    for n in range(6, 12): E(dma_items(n))
    E(g_job_compute())
    if has_ssm:
        nt0 = [g for g in groups if g['k'] == 'S'][0]['nt']
        E(ssm_params(nt0))
    fill = [Filler() for _ in range(NG + 1)]
    extra_bar = {}
    ffn_idx = 0
    exposed = {}
    for g, gr in enumerate(groups):
        nfr = 36 * gr.get('nt', 2) * 1
        if gr['k'] == 'F':
            hs = [s_op('s_add_u32', sHB, sKG, ffn_idx), s_op('s_lshl_b32', sHB, sHB, 10)]
            items = [hs] + bundle_scc(ffn_epilogue(gr['buf'], sHB))
            ffn_idx += 1
            if gr.get('exposed') or g == NG - 1: exposed[g] = items
            else: fill[g + 1].add(items, at=12)
        else:
            nt = gr['nt']; buf = gr['buf']
            s1, wr = ssm_stage1(buf, nt)
            fill[g + 1].add(bundle_scc(s1), at=12)
            bar_stage = 3 * (g + 1) + 2
            extra_bar[bar_stage] = wr
            s2, st = ssm_stage2(nt)
            gap_bar = 12 * 16 + 4
            fill[g + 1].add(bundle_scc(s2), at=gap_bar)
            nxt = g + 2
            fill[nxt].add(bundle_scc(ssm_flag(st)), at=48)
            fill[nxt].add([ssm_poll_issue()], at=90)
            fill[nxt].add([ssm_poll_check()], at=150)
            hs = [s_op('s_mul_i32', sHB, sSG, 36, scc=False), s_op('s_add_u32', sHB, sHB, 36),
                  s_op('s_add_u32', sHB, sHB, sCT), s_op('s_lshl_b32', sHB, sHB, 10)]
            fill[nxt].add([hs], at=150)
            fill[nxt].add(bundle_scc(ssm_stage3_loads(nt)), at=150)
            fill[nxt].add(bundle_scc(ssm_stage3_carry(nt)), at=200)
            for t in range(nt):
                fill[nxt].add(bundle_scc(ssm_stage3(buf, t, nt, sHB)), at=200)
    first_frag_of_slot = {}
    for F, (n, tile, mat) in enumerate(frags):
        first_frag_of_slot.setdefault(n, F)
    NF = len(frags)
    def issue_reads(F, em_now):
        n = frags[F][0]
        items = []
        if F == first_frag_of_slot[n] and n % 6 == 0:
            st = n // 6
            deps = [dma[m] for m in range(n, n + 6)] + extra_bar.get(st, [])
            for dep in extra_bar.get(st, []):
                while id(dep) not in em.lg_seq:
                    _, it = fill[curg_box[0]].q.pop(0); em.emit(it)
            items.append(barrier(after=deps))
        return items + frag_reads(F)
    curg_box = [0]
    for F in range(3): E(issue_reads(F, em))
    gap = 0; curg = 0
    pend_dma = []
    for F, (n, tile, mat) in enumerate(frags):
        g, i = divmod(n, 18); gr = groups[g]
        if g != curg:
            fill[curg].flush(em)
            if curg in exposed:
                E(exposed[curg])
            curg = g; gap = 0; curg_box[0] = g
        newslot = (F == first_frag_of_slot[n])
        if newslot:
            if n < 3: tgt = [12 + 2 * n, 13 + 2 * n]
            elif n < 6: tgt = [18 + 2 * (n - 3), 19 + 2 * (n - 3)]
            else: tgt = [n + 18]
            tgt = [m for m in tgt if m < nslot]
            pend_dma = []
            for m in tgt:
                if m % 18 == 0 and m > 0 and groups[m // 18]['k'] == 'F' and any(x['k'] == 'F' for x in groups[:m // 18]):
                    pend_dma.append(v_op2('v_add_u32', vDW, 64, vDW))
                pend_dma.append(dma_items(m))
            if g == 0 and i % 2 == 0 and i + 4 < 18:
                pend_dma += xloads(i + 4)
        b = WF + (F % 4) * 4
        wf = f'v[{b}:{b+3}]'
        nxt_reads = issue_reads(F + 3, em) if F + 3 < NF else []
        for tt in range(4):
            d = acc(gr['buf'], tile, mat, tt)
            c = 0 if i == 0 else d
            if gr['k'] == 'F': E(mfma(d, wf, xfrag(i, tt), c))
            else: E(mfma(d, xfrag(i, tt), wf, c))
            cap = 2
            if nxt_reads and tt <= 1:
                if tt == 0:
                    k = 2 if nxt_reads[0].kind == 'barrier' else 1
                    for it in nxt_reads[:k]: E(it)
                    nxt_reads = nxt_reads[k:]
                else:
                    for it in nxt_reads: E(it)
                    nxt_reads = []
                cap -= 1
            elif pend_dma and tt >= 2:
                it = pend_dma.pop(0); E(it); cap -= 2
            if cap > 0: fill[g].take(em, gap, cap)
            gap += 1
        if F + 1 < NF and first_frag_of_slot.get(frags[F + 1][0]) == F + 1:
            for it in pend_dma: E(it)
            pend_dma = []
    fill[curg].flush(em)
    if curg in exposed: E(exposed[curg])
    fill[NG].flush(em)
    if late_job: late_job(em)
    em.raw('  s_endpgm')
```

```python
from core import *
from cfg import *
from k1 import build_srd, srd, sload
from k1main import Filler, bundle_scc, weight

S_WS, S_WD = 4, 8
sW, sKS, sMB, sNB, sROT = 's12', 's13', 's14', 's15', 's16'
sHo, sWo, sA, sB_, sC, sK, sLW = 's17', 's18', 's19', 's20', 's21', 's22', 's23'
sHst = lambda k: f's{24+k}'
vLane = 'v1'
vD = [f'v{2+n}' for n in range(9)]
vL = ['v11', 'v12', 'v13']
vR = ['v14', 'v15', 'v16']
vH = ['v17', 'v18']
vG = ['v19', 'v20']; vOG = ['v21', 'v22']
vPo = 'v23'
vU = ['v24', 'v25', 'v26', 'v27']
ACF, ACS = 32, 104
WF = 176; NWF = 6
SLOT = 36864; RB = 49152
NHB = 8
def accF(t, nt): b = ACF + (t * 9 + nt) * 4; return f'v[{b}:{b+3}]'
def accS(t, nt): b = ACS + (t * 9 + nt) * 4; return f'v[{b}:{b+3}]'
def hfrag(step, t): b = ((step % NHB) * 2 + t) * 4; return f'a[{b}:{b+3}]'
LDS_K2 = 4 * SLOT

def gen_k2(em):
    E = em.emit
    E(s_cmp('s_cmp_ge_u32', 's2', 256))
    em.raw('  s_cbranch_scc1 K2_EXIT')
    sload(em, S_WS, 2, 128); sload(em, S_WD, 2, 96)
    E(v_op2('v_and_b32', vLane, 63, 'v0')); E(v_op2('v_lshrrev_b32', vU[0], 6, 'v0'))
    E(s_op('s_and_b32', sA, 's2', 7)); E(s_op('s_lshr_b32', sB_, 's2', 3))
    E(Ins(f'v_readfirstlane_b32 {sW}, {vU[0]}', defs=[sW], uses=[vU[0]]))
    E(s_op('s_and_b32', sKS, sA, 3)); E(s_op('s_lshr_b32', sA, sA, 2)); E(s_op('s_lshl_b32', sA, sA, 3))
    E(s_op('s_lshr_b32', sC, sB_, 2)); E(s_op('s_add_u32', sMB, sA, sC)); E(s_op('s_and_b32', sNB, sB_, 3))
    E(s_op('s_lshl_b32', sA, sNB, 1)); E(s_op('s_add_u32', sA, sA, sC)); E(s_op('s_sub_u32', sB_, sA, 9))
    E(s_cmp('s_cmp_ge_u32', sA, 9)); E(s_csel(sROT, sB_, sA))
    em.raw('  s_waitcnt lgkmcnt(0)')
    E(build_srd(S_WS, WS_SIZE)); E(build_srd(S_WD, F * XROW))
    def piece_off(dst, idx_base_imm=None, idx_base_s=None):
        if idx_base_s is None: E(v_op2('v_add_u32', vU[0], idx_base_imm, vLane))
        else: E(v_op2('v_add_u32', vU[0], idx_base_s, vLane))
        E(v_op2('v_mul_u32_u24', vU[1], 3641, vU[0])); E(v_op2('v_lshrrev_b32', vU[1], 16, vU[1]))
        E(v_op2('v_mul_u32_u24', vU[2], 18, vU[1])); E(v_op2('v_sub_u32', vU[2], vU[0], vU[2]))
        E(v_op2('v_mul_u32_u24', vU[1], XROW, vU[1])); E(v_op2('v_lshlrev_b32', vU[2], 4, vU[2]))
        E(v_op2('v_add_u32', dst, vU[1], vU[2])); E(v_op2('v_add_u32', dst, sC, dst))
    E(s_op('s_mul_i32', sC, sNB, 288, scc=False))
    for pc in range(9): piece_off(vD[pc], idx_base_imm=pc * 64)
    for k in range(3):
        E(s_op('s_add_u32', sA, sW, 4 * k)); E(s_op('s_lshl_b32', sA, sA, 6))
        piece_off(vL[k], idx_base_s=sA)
    E(v_op2('v_lshrrev_b32', vU[0], 4, vLane)); E(v_op2('v_lshlrev_b32', vU[0], 2, vU[0]))
    E(v_op2('v_and_b32', vU[1], 15, vLane)); E(v_op2('v_lshrrev_b32', vU[2], 2, vU[1])); E(v_op2('v_add_u32', vU[0], vU[0], vU[2]))
    E(v_op2('v_mul_u32_u24', vU[0], 288, vU[0])); E(v_op2('v_and_b32', vU[1], 3, vU[1])); E(v_op2('v_lshlrev_b32', vU[1], 3, vU[1]))
    E(v_op2('v_add_u32', vR[0], vU[0], vU[1])); E(v_op2('v_add_u32', vR[1], RB, vR[0])); E(v_op2('v_add_u32', vR[2], 2 * RB, vR[0]))
    E(s_op('s_lshl_b32', sA, sMB, 3)); E(s_op('s_lshl_b32', sB_, sW, 1)); E(s_op('s_add_u32', sA, sA, sB_))
    E(s_op('s_mul_i32', sB_, sA, HS, scc=False))
    E(v_op2('v_lshlrev_b32', vU[0], 4, vLane)); E(v_op2('v_add_u32', vH[0], sB_, vU[0])); E(v_op2('v_add_u32', vH[1], HS, vH[0]))
    E(s_op('s_lshr_b32', sB_, sA, 2)); E(s_op('s_lshl_b32', sB_, sB_, 6)); E(s_op('s_and_b32', sC, sA, 3)); E(s_op('s_lshl_b32', sC, sC, 2))
    E(s_op('s_add_u32', sB_, sB_, sC))
    E(v_op2('v_and_b32', vU[1], 12, vLane)); E(v_op2('v_lshlrev_b32', vU[1], 2, vU[1])); E(v_op2('v_and_b32', vU[2], 3, vLane))
    E(v_op2('v_add_u32', vU[1], vU[1], vU[2])); E(v_op2('v_add_u32', vU[1], sB_, vU[1]))
    E(v_op2('v_lshlrev_b32', vU[1], 2, vU[1])); E(v_op2('v_add_u32', vU[1], WS_G, vU[1]))
    E(buf_load(1, vG[0], vU[1], srd(S_WS), 0)); E(buf_load(1, vG[1], vU[1], srd(S_WS), 0, off=16))
    E(s_op('s_lshl_b32', sA, sKS, 6)); E(s_op('s_lshl_b32', sB_, sMB, 2)); E(s_op('s_add_u32', sA, sA, sB_)); E(s_op('s_add_u32', sA, sA, sNB))
    E(s_op('s_lshl_b32', sA, sA, 2)); E(s_op('s_add_u32', sA, sA, sW)); E(s_op('s_mul_i32', sA, sA, 18 * 1024, scc=False))
    E(s_op('s_add_u32', sA, sA, WS_P)); E(v_op2('v_add_u32', vPo, sA, vU[0]))
    E(s_op('s_mul_i32', sLW, sW, 9216, scc=False))
    NST = 12
    nsteps = lambda st: 4 if st < 11 else 1
    dma = {}
    def stage_scalars(st):
        o = []
        hs = sHst(st % 4)
        if st < 9:
            o += [s_op('s_add_u32', sA, sROT, st), s_op('s_sub_u32', sB_, sA, 9), s_cmp('s_cmp_ge_u32', sA, 9), s_csel(sA, sB_, sA),
                  s_op('s_lshl_b32', sA, sA, 2),
                  s_op('s_mul_i32', sB_, sKS, 45, scc=False), s_op('s_add_u32', sB_, sB_, sA), s_op('s_lshl_b32', hs, sB_, 10),
                  s_op('s_mul_i32', sB_, sKS, 36, scc=False), s_op('s_add_u32', sB_, sB_, sA), s_op('s_add_u32', sB_, sB_, sW),
                  s_op('s_mul_i32', sWo, sB_, 32 * XROW, scc=False)]
        else:
            lt = 4 * (st - 9)
            o += [s_op('s_mul_i32', sB_, sKS, 45, scc=False), s_op('s_add_u32', sB_, sB_, 36 + lt), s_op('s_lshl_b32', hs, sB_, 10),
                  s_op('s_mul_i32', sB_, sKS, 9, scc=False), s_op('s_add_u32', sB_, sB_, lt)]
            if st < 11: o += [s_op('s_add_u32', sB_, sB_, sW)]
            o += [s_op('s_mul_i32', sWo, sB_, 32 * XROW, scc=False), s_op('s_add_u32', sWo, sWo, WS_CT)]
        return o
    def dma_items(st):
        o = []; ds = []
        slot = (st % 4) * SLOT
        sr = srd(S_WD) if st < 9 else srd(S_WS)
        if st < 11:
            for pc in range(9):
                d = buf_dma(vD[pc], sr, sWo); ds.append(d)
                o.append([s_op('s_add_u32', 'm0', sLW, slot + pc * 1024), Ins('s_nop 0', kind='wait'), d])
        else:
            for k in range(3):
                d = buf_dma(vL[k], sr, sWo); ds.append(d)
                o.append([s_op('s_lshl_b32', sA, sW, 10), s_op('s_add_u32', 'm0', sA, slot + k * 4096), Ins('s_nop 0', kind='wait'), d])
        dma[st] = ds
        return o
    steps = [(st, t) for st in range(NST) for t in range(nsteps(st))]
    NS = len(steps)
    def hloads(s):
        st, t = steps[s]
        return [[s_op('s_add_u32', sHo, sHst(st % 4), t * 1024), buf_load(4, hfrag(s, tt), vH[tt], srd(S_WS), sHo)] if tt == 0
                else buf_load(4, hfrag(s, tt), vH[tt], srd(S_WS), sHo) for tt in range(2)]
    PH = NHB - 1
    E(stage_scalars(0)); [E(x) for x in dma_items(0)]
    for s in range(4): [E(x) for x in hloads(s)]
    E(stage_scalars(1)); [E(x) for x in dma_items(1)]
    for s in range(4, PH): [E(x) for x in hloads(s)]
    for t in range(2):
        E(v_op2('v_sub_f32', vOG[t], 1.0, vG[t]))
        E(Ins(f'v_cvt_pk_bf16_f32 {vOG[t]}, {vOG[t]}, {vOG[t]}', defs=[vOG[t]], uses=[vOG[t]]))
        E(v_op2('v_lshlrev_b32', vOG[t], 16, vOG[t]))
    frags = [(s, nt) for s in range(NS) for nt in range(9)]
    NF = len(frags); DIST = 3
    def reads(Fi):
        s, nt = frags[Fi]; st, t = steps[s]
        off = (st % 4) * SLOT + t * 9216 + nt * 32
        h = off // RB; off -= h * RB
        b = WF + (Fi % NWF) * 4
        o = []
        if nt == 0 and t == 0: o.append(barrier(after=dma[st]))
        return o + [ds_read('ds_read_b64_tr_b16', f'v[{b}:{b+1}]', vR[h], off),
                    ds_read('ds_read_b64_tr_b16', f'v[{b+2}:{b+3}]', vR[h], off + 4608)]
    for Fi in range(DIST): E(reads(Fi))
    pend = []
    for Fi, (s, nt) in enumerate(frags):
        st, t = steps[s]
        if nt == 0:
            for it in pend: E(it)
            pend = []
            if t == 0 and st + 2 < NST:
                pend.append(stage_scalars(st + 2)); stage_dma = dma_items(st + 2)
            if st + 2 < NST:
                n = len(stage_dma); per = (n + nsteps(st) - 1) // nsteps(st)
                pend += stage_dma[t * per:(t + 1) * per]
            if s + PH < NS: pend += hloads(s + PH)
        b = WF + (Fi % NWF) * 4; wf = f'v[{b}:{b+3}]'
        rd = reads(Fi + DIST) if Fi + DIST < NF else []
        first = (s == 0) if st < 9 else (s == 36)
        for tt in range(2):
            d = accF(tt, nt) if st < 9 else accS(tt, nt)
            E(mfma(d, wf, hfrag(s, tt), 0 if first else d))
            if rd:
                if tt == 0:
                    k = 2 if rd[0].kind == 'barrier' else 1
                    for it in rd[:k]: E(it)
                    rd = rd[k:]
                else:
                    for it in rd: E(it)
                    rd = []
            if tt == 1 and pend and nt >= 1:
                E(pend.pop(0))
    for it in pend: E(it)
    for t in range(2):
        for nt in range(9):
            bf = ACF + (t * 9 + nt) * 4; bs = ACS + (t * 9 + nt) * 4
            for r in range(4):
                E(v_op2('v_mul_f32', f'v{bf+r}', vOG[t], f'v{bf+r}'))
                E(v_op3('v_fma_f32', f'v{bf+r}', vG[t], f'v{bs+r}', f'v{bf+r}'))
            E(s_mov(sA, (t * 9 + nt) * 1024))
            E(buf_store(4, f'v[{bf}:{bf+3}]', vPo, srd(S_WS), sA))
    em.raw('  s_endpgm')
    em.label('K2_EXIT')
    em.raw('  s_endpgm')
```

```python
from core import *
from cfg import *
from k1 import build_srd, srd, sload

def gen_k3(em):
    E = em.emit
    S_WS, S_X, S_DS, S_O = 4, 8, 12, 16
    sW, sA, sB_, sC, sD_, sK = 's20', 's21', 's22', 's23', 's24', 's25'
    sT, sPW, sIdx = 's26', 's27', 's28'
    E(s_cmp('s_cmp_ge_u32', 's2', 1152))
    em.raw('  s_cbranch_scc1 K3_EXIT')
    sload(em, S_WS, 2, 128); sload(em, S_X, 2, 0); sload(em, S_DS, 2, 64); sload(em, S_O, 2, 112)
    E(v_op2('v_and_b32', 'v1', 63, 'v0')); E(v_op2('v_lshrrev_b32', 'v2', 6, 'v0'))
    E(s_op('s_lshl_b32', sA, 's2', 2))
    E(Ins(f'v_readfirstlane_b32 {sW}, v2', defs=[sW], uses=['v2']))
    E(s_op('s_add_u32', sA, sA, sW))
    E(s_op('s_mul_i32', sB_, sA, 3641, scc=False)); E(s_op('s_lshr_b32', sB_, sB_, 16))
    E(s_op('s_mul_i32', sC, sB_, 18, scc=False)); E(s_op('s_sub_u32', sIdx, sA, sC))
    E(s_op('s_and_b32', sPW, sB_, 3)); E(s_op('s_lshr_b32', sT, sB_, 2))
    em.raw('  s_waitcnt lgkmcnt(0)')
    E(build_srd(S_WS, WS_SIZE)); E(build_srd(S_X, L * XROW)); E(build_srd(S_DS, D * 2)); E(build_srd(S_O, L * D * 4))
    E(s_op('s_lshl_b32', sC, sA, 10)); E(s_op('s_add_u32', sC, sC, WS_P))
    E(v_op2('v_lshlrev_b32', 'v3', 4, 'v1')); E(v_op2('v_add_u32', 'v3', sC, 'v3'))
    for ks in range(4):
        E(s_mov(sK, ks * 64 * 4 * 18 * 1024)); E(buf_load(4, f'v[{8+4*ks}:{11+4*ks}]', 'v3', srd(S_WS), sK))
    E(s_cmp('s_cmp_ge_u32', sIdx, 9)); E(s_csel(sA, 1, 0)); E(s_op('s_mul_i32', sB_, sA, 9, scc=False)); E(s_op('s_sub_u32', sB_, sIdx, sB_))
    E(s_op('s_lshr_b32', sC, sT, 2)); E(s_op('s_lshl_b32', sC, sC, 3)); E(s_op('s_lshl_b32', sD_, sPW, 1))
    E(s_op('s_add_u32', sC, sC, sD_)); E(s_op('s_add_u32', sC, sC, sA))
    E(s_op('s_lshr_b32', sA, sC, 2)); E(s_op('s_lshl_b32', sA, sA, 6)); E(s_op('s_and_b32', sC, sC, 3)); E(s_op('s_lshl_b32', sC, sC, 2))
    E(s_op('s_add_u32', sA, sA, sC))
    E(s_op('s_and_b32', sC, sT, 3)); E(s_op('s_mul_i32', sC, sC, 144, scc=False)); E(s_op('s_lshl_b32', sB_, sB_, 4)); E(s_op('s_add_u32', sC, sC, sB_))
    E(v_op2('v_and_b32', 'v4', 12, 'v1')); E(v_op2('v_lshlrev_b32', 'v4', 2, 'v4')); E(v_op2('v_and_b32', 'v5', 3, 'v1'))
    E(v_op2('v_add_u32', 'v4', 'v4', 'v5')); E(v_op2('v_add_u32', 'v4', sA, 'v4'))
    E(v_op2('v_lshrrev_b32', 'v5', 4, 'v1')); E(v_op2('v_lshlrev_b32', 'v5', 2, 'v5')); E(v_op2('v_add_u32', 'v5', sC, 'v5'))
    E(v_op2('v_lshlrev_b32', 'v6', 2, 'v4')); E(v_op2('v_add_u32', 'v6', WS_G, 'v6'))
    E(buf_load(1, 'v24', 'v6', srd(S_WS), 0))
    E(v_op2('v_mul_u32_u24', 'v6', D, 'v4')); E(v_op2('v_add_u32', 'v6', 'v6', 'v5'))
    E(v_op2('v_lshlrev_b32', 'v7', 1, 'v6')); E(buf_load(2, 'v[26:27]', 'v7', srd(S_X), 0))
    E(v_op2('v_lshlrev_b32', 'v7', 1, 'v5')); E(buf_load(2, 'v[28:29]', 'v7', srd(S_DS), 0))
    E(v_op2('v_lshlrev_b32', 'v6', 2, 'v6'))
    for r in range(4):
        E(v_op2('v_add_f32', f'v{8+r}', f'v{8+r}', f'v{12+r}')); E(v_op2('v_add_f32', f'v{16+r}', f'v{16+r}', f'v{20+r}'))
        E(v_op2('v_add_f32', f'v{8+r}', f'v{8+r}', f'v{16+r}'))
    for h in range(2):
        x, d = f'v{26+h}', f'v{28+h}'
        E(v_op2('v_lshlrev_b32', 'v30', 16, x)); E(v_op2('v_and_b32', 'v31', '0xffff0000', x))
        E(v_op2('v_lshlrev_b32', 'v32', 16, d)); E(v_op2('v_and_b32', 'v33', '0xffff0000', d))
        E(v_op2('v_mul_f32', 'v30', 'v30', 'v32')); E(v_op2('v_mul_f32', 'v31', 'v31', 'v33'))
        E(Ins('v_cvt_pk_bf16_f32 v30, v30, v31', defs=['v30'], uses=['v30', 'v31']))
        E(v_op2('v_lshlrev_b32', 'v32', 16, 'v30')); E(v_op2('v_and_b32', 'v33', '0xffff0000', 'v30'))
        E(v_op3('v_fma_f32', f'v{8+2*h}', 'v24', 'v32', f'v{8+2*h}')); E(v_op3('v_fma_f32', f'v{9+2*h}', 'v24', 'v33', f'v{9+2*h}'))
    E(buf_store(4, 'v[8:11]', 'v6', srd(S_O), 0))
    em.raw('  s_endpgm')
    em.label('K3_EXIT')
    em.raw('  s_endpgm')
```

```python
import sys
from core import *
from cfg import *
import k1, k1main, k1late, k2, k3

HEAD = open('gated_mix__ssm_conv_s5__glu_gated_reglu__prompt.s.ref').read().split('\n')
HEAD = [l for l in HEAD if l.startswith(';') and '@launch' not in l and 'Override launch' not in l and 'grid=ceil' not in l]

def kernel(name, body, vgpr, accum, sgpr=102):
    return (f'.globl {name}\n.p2align 8\n.type {name},@function\n{name}:\n' + body,
            f'.amdhsa_kernel {name}\n  .amdhsa_next_free_vgpr {vgpr}\n  .amdhsa_next_free_sgpr {sgpr}\n'
            f'  .amdhsa_accum_offset {accum}\n  .amdhsa_group_segment_fixed_size 0\n  .amdhsa_kernarg_size 136\n'
            f'  .amdhsa_user_sgpr_count 2\n  .amdhsa_user_sgpr_kernarg_segment_ptr 1\n'
            f'  .amdhsa_system_sgpr_workgroup_id_x 1\n.end_amdhsa_kernel\n')

def gen_k1():
    em = Emitter()
    k1.prologue(em)
    em.emit(s_cmp('s_cmp_lt_u32', k1.sI, 4)); em.raw('  s_cbranch_scc1 K1_TB')
    em.emit(s_cmp('s_cmp_eq_u32', k1.sI, 4)); em.raw('  s_cbranch_scc1 K1_TA1')
    import copy
    def fork(label, groups, late=None):
        sub = Emitter()
        sub.__dict__.update({k: copy.copy(v) for k, v in em.__dict__.items() if k not in ('lines',)})
        sub.lines = []
        if label: sub.label(label)
        k1main.gen_type(sub, label, groups, late)
        return sub.lines
    Fg = lambda b, **k: dict(k='F', buf=b, **k)
    la = fork(None, [Fg('X'), Fg('Y'), Fg('X'), Fg('Y'), Fg('X')], k1late.ct_job)
    lb = fork('K1_TB', [dict(k='S', buf='X', nt=2), Fg('Y', exposed=True), Fg('Y'), Fg('X'), Fg('Y')])
    lc = fork('K1_TA1', [dict(k='S', buf='X', nt=1), Fg('Y', exposed=True), Fg('Y'), Fg('X'), Fg('Y'), Fg('X')])
    lines = em.lines + la + lb + lc + ['K1_EXIT:', '  s_endpgm']
    return '\n'.join(lines) + '\n'

def shorten(txt):
    import re
    txt = re.sub(r'v_mfma_f32_16x16x32_bf16 ', 'MF ', txt)
    txt = re.sub(r'ds_read_b64_tr_b16 ', 'TR ', txt)
    return txt
MACROS = '''.macro MF a, b, c, d
  v_mfma_f32_16x16x32_bf16 \\a, \\b, \\c, \\d
.endm
'''

def main(out):
    b1 = gen_k1()
    e2 = Emitter(); k2.gen_k2(e2)
    e3 = Emitter(); k3.gen_k3(e3)
    ks = [kernel('k1_kernel', b1, 512, 256), kernel('k2_kernel', e2.text(), 272, 208), kernel('k3_kernel', e3.text(), 40, 40, 32)]
    launch = [f'; @launch kernel=k1_kernel grid=(256,1,1) block=(256,1,1) lds={k1.LDS_K1}',
              f'; @launch kernel=k2_kernel grid=(256,1,1) block=(256,1,1) lds={k2.LDS_K2}',
              f'; @launch kernel=k3_kernel grid=(1152,1,1) block=(256,1,1) lds=0']
    txt = '\n'.join(HEAD + launch) + '\n.amdgcn_target "amdgcn-amd-amdhsa--gfx950"\n.text\n'
    txt += ''.join(k[0] for k in ks)
    txt += '.section .rodata,"a"\n' + ''.join('.p2align 6\n' + k[1] for k in ks)
    open(out, 'w').write(txt)
    print('written', out, len(txt), 'bytes')
if __name__ == '__main__':
    main(sys.argv[1] if len(sys.argv) > 1 else 'gated_mix__ssm_conv_s5__glu_gated_reglu__prompt.s')
```
